```python
import torch

def _softmax(x, axis=-1):
    return torch.softmax(x, dim=axis)
def _gelu(x):
    return torch.nn.functional.gelu(x, approximate="tanh")
def _silu(x):
    return torch.nn.functional.silu(x)
def _sigmoid(x):
    return torch.sigmoid(x)
def _layernorm(x, axis=-1, eps=1e-5):
    m = x.mean(dim=axis, keepdim=True)
    v = x.var(dim=axis, keepdim=True, unbiased=False)
    return (x - m) / torch.sqrt(v + eps)
def _scatter_add(tgt, idx, src, axis=0):
    return tgt.clone().index_add_(axis, idx, src)
def _segment_sum(src, seg, n):
    out = torch.zeros((n,) + src.shape[1:], dtype=src.dtype)
    return out.index_add_(0, seg, src)
def _pad(x, pw):
    flat = tuple(v for pair in reversed(pw) for v in pair)
    return torch.nn.functional.pad(x, flat)

kernel_name = 'parallel_sum__ssm_conv_h3__mixer_s_mlp__prompt'

def setup_inputs():

    _w = (lambda a: (lambda t: t.to(torch.bfloat16) if t.is_floating_point() else t)(torch.as_tensor(a)))
    def _A_setup():
        B, S, D = 1, 2048, 640
        ks = 4
        return {
            "q": _w((lambda *s: torch.randn(*s, dtype=torch.bfloat16) * 0.05)(B, S, D)),
            "k": _w((lambda *s: torch.randn(*s, dtype=torch.bfloat16) * 0.8)(B, S, D)),
            "v": _w((lambda *s: torch.randn(*s, dtype=torch.bfloat16) * 0.8)(B, S, D)),
            "shift_k": _w((lambda *s: torch.randn(*s, dtype=torch.bfloat16) * 0.8)(D, ks) * 0.5),
            "ssm_k": _w((lambda *s: torch.randn(*s, dtype=torch.bfloat16) * 1.6)(D, S) * (1.0 / S ** 0.5)),
            "ssm_D": _w((lambda *s: torch.randn(*s, dtype=torch.bfloat16) * 0.8)(D)),
        }
    _A_in = _A_setup()

    def _B_setup():
        B, S, D, F = 1, 2048, 640, 1536
        return {
            "x":  _w((lambda *s: torch.randn(*s, dtype=torch.bfloat16) * 0.05)(B, S, D)),
            "w1": _w((lambda *s: torch.randn(*s, dtype=torch.bfloat16) * 3.2)(D, D) * (D ** -0.5)),
            "w2": _w((lambda *s: torch.randn(*s, dtype=torch.bfloat16) * 3.2)(D, D) * (D ** -0.5)),
            "w3": _w((lambda *s: torch.randn(*s, dtype=torch.bfloat16) * 3.2)(D, F) * (D ** -0.5)),
            "w4": _w((lambda *s: torch.randn(*s, dtype=torch.bfloat16) * 3.2)(F, D) * (F ** -0.5)),
        }
    _B_in = _B_setup()

    return {
        "A_q": _A_in["q"],
        "A_k": _A_in["k"],
        "A_v": _A_in["v"],
        "A_shift_k": _A_in["shift_k"],
        "A_ssm_k": _A_in["ssm_k"],
        "A_ssm_D": _A_in["ssm_D"],
        "B_x": _B_in["x"],
        "B_w1": _B_in["w1"],
        "B_w2": _B_in["w2"],
        "B_w3": _B_in["w3"],
        "B_w4": _B_in["w4"],
    }

def reference(A_q, A_k, A_v, A_shift_k, A_ssm_k, A_ssm_D, B_x, B_w1, B_w2, B_w3, B_w4):
    def _A_ref(q, k, v, shift_k, ssm_k, ssm_D):
        B, S, D = q.shape
        ks = shift_k.shape[-1]
        k_pad = _pad(k, ((0, 0), (ks - 1, 0), (0, 0)))
        k_shift = torch.zeros_like(k)
        for t in range(ks):
            k_shift = k_shift + k_pad[:, t:t + S, :] * shift_k[:, ks - 1 - t][None, None, :]
        kv = k_shift * v
        L = 2 * S
        kv_pad = _pad(kv, ((0, 0), (0, S), (0, 0)))
        kf_pad = _pad(ssm_k, ((0, 0), (0, S)))
        kv_f = (lambda x, axes=(-2,-1): torch.fft.rfft2(x.float(), dim=axes))(kv_pad[:, None, :, :], axes=(1, 2))
        kf_f = (lambda x, axes=(-2,-1): torch.fft.rfft2(x.float(), dim=axes))(kf_pad[:, None, :], axes=(1, 2))
        kf_f = (lambda x, *d: x.permute(*d))(kf_f, 1, 2, 0)
        y_f = kv_f * kf_f[None, :, :, :]
        y = (lambda x, s, axes=(-2,-1): torch.fft.irfft2(x, s=s, dim=axes).to(torch.bfloat16))(y_f, (1, L), axes=(1, 2))[:, 0, :S, :]
        y = y + kv * ssm_D[None, None, :]
        return q * y

    def _B_ref(x, w1, w2, w3, w4):
        B, S, D = x.shape
        h = _gelu(_layernorm(x, axis=-1) @ w1)
        c = D // 4
        g0 = _pad(h[:, :, 0*c:1*c], ((0, 0), (1, 0), (0, 0)))[:, :S, :]
        g1 = _pad(h[:, :, 1*c:2*c], ((0, 0), (0, 1), (0, 0)))[:, 1:, :]
        g2 = _pad(h[:, :, 2*c:3*c], ((0, 0), (2, 0), (0, 0)))[:, :S, :]
        g3 = _pad(h[:, :, 3*c:   ], ((0, 0), (0, 2), (0, 0)))[:, 2:, :]
        hs = torch.concatenate([g0, g1, g2, g3], axis=-1) @ w2
        x1 = x + hs
        h2 = _gelu(_layernorm(x1, axis=-1) @ w3) @ w4
        return x1 + h2

    x = A_q
    xn = _layernorm(x, axis=-1)
    return x + _A_ref(xn, A_k, A_v, A_shift_k, A_ssm_k, A_ssm_D) + _B_ref(xn, B_w1, B_w2, B_w3, B_w4)
```

```python
import struct
def f2h(x): return hex(struct.unpack('<I',struct.pack('<f',x))[0])
S=2048; D=640; F=1536
KA=dict(q=0,k=8,v=16,shk=24,ssmk=32,ssmD=40,bx=48,w1=56,w2=64,w3=72,w4=80,out=88,dbg=96,ws=104)
UP=4224
WS_H=0
WS_ST=0x290000
WS_U0=0x2A0000
WS_U1=WS_U0+640*UP
WS_X1=0x800000
WS_G =0xB00000
WS_Y =0x1200000
class Asm:
    def __init__(s): s.l=[]
    def __call__(s,t):
        for x in t.strip('\n').split('\n'): s.l.append('  '+x.strip())
    def lab(s,n): s.l.append(n+':')
    def text(s): return '\n'.join(s.l)+'\n'
    def srd(s,d,b,off,size):
        if off:
            s(f"s_add_u32 s{d}, s{b}, {hex(off)}\ns_addc_u32 s{d+1}, s{b+1}, 0")
        else:
            s(f"s_mov_b32 s{d}, s{b}\ns_mov_b32 s{d+1}, s{b+1}")
        s(f"s_mov_b32 s{d+2}, {hex(size)}\ns_mov_b32 s{d+3}, 0x00020000")
def vr(a,n): return f"v[{a}:{a+n-1}]" if n>1 else f"v{a}"
def sr(a,n): return f"s[{a}:{a+n-1}]"
```

```python
from common import *
K1=2.0*0.7978845608028654*1.4426950408889634
K2=K1*0.044715
def gemm(a,st):
    MT=128
    NT={'A':64,'B':64,'C':128,'D':64}[st]
    K={'A':640,'B':640,'C':640,'D':1536}[st]
    N={'A':640,'B':640,'C':1536,'D':640}[st]
    NS={'A':6,'B':6,'C':4,'D':6}[st]
    stats=st in 'AC'
    WN=NT//64; WM=4//WN; TM=MT//(32*WM); TN=2
    AP=K*2; WP=N*2; LW=NT*2
    ASZ=MT*128; SLOT=ASZ+64*LW
    NA=4; NW=(64*LW)//4096
    ND=NA+NW; NCH=K//64
    XTRA=NS*SLOT
    L=st
    ACC=0; nacc=TM*TN*16
    FA=64
    FW=FA+2*TM*4
    AA=FW+16
    WA=AA+4
    DA=WA+8
    RS=DA+8
    RQ=RS+2; CS=RQ+2
    T=CS+2
    R1=T+16
    R2=R1+16; MR=R2+16; OA=MR+2; LN=OA+4
    a(f"""s_load_dwordx2 s[4:5], s[0:1], {KA['ws']}
    s_load_dwordx2 s[6:7], s[0:1], {KA[{'A':'w1','B':'w2','C':'w3','D':'w4'}[st]]}
    s_load_dwordx2 s[32:33], s[0:1], {KA['q']}""")
    if st=='D': a(f"s_load_dwordx2 s[34:35], s[0:1], {KA['out']}")
    a(f"""v_lshrrev_b32 v{T}, 6, v0
    v_and_b32 v{LN}, 63, v0
    v_readfirstlane_b32 s36, v{T}
    s_and_b32 s37, s2, 7
    s_lshr_b32 s38, s2, 3
    s_and_b32 s39, s38, 1
    s_lshl_b32 s37, s37, 1
    s_add_u32 s37, s37, s39
    s_lshr_b32 s38, s38, 1
    s_lshl_b32 s40, s37, 7
    s_mul_i32 s41, s38, {NT}""")
    if WN==1: a("s_mov_b32 s42, s36\ns_mov_b32 s43, 0")
    else: a("s_lshr_b32 s42, s36, 1\ns_and_b32 s43, s36, 1")
    a(f"""v_lshrrev_b32 v{T}, 3, v{LN}
    s_lshl_b32 s44, s36, 5
    s_add_u32 s44, s44, s40
    v_add_u32 v{T}, s44, v{T}
    s_mov_b32 s45, {AP}
    v_mul_lo_u32 v{T}, v{T}, s45
    v_lshrrev_b32 v{T+1}, 4, v{LN}
    v_and_b32 v{T+2}, 7, v{LN}
    v_xor_b32 v{T+1}, v{T+1}, v{T+2}
    v_lshlrev_b32 v{T+1}, 4, v{T+1}
    v_xor_b32 v{T+2}, 64, v{T+1}
    v_add_u32 v{DA}, v{T}, v{T+1}
    v_add_u32 v{DA+1}, v{T}, v{T+2}
    v_add_u32 v{DA+1}, {8*AP}, v{DA+1}
    v_add_u32 v{DA+2}, {16*AP}, v{DA}
    v_add_u32 v{DA+3}, {16*AP}, v{DA+1}""")
    UPR=LW//16; RPI=64//UPR; sh=UPR.bit_length()-1
    a(f"""v_lshrrev_b32 v{T}, {sh}, v{LN}
    v_and_b32 v{T+1}, {UPR-1}, v{LN}""")
    if NT==64: a(f"v_and_b32 v{T+2}, 2, v{T}")
    else: a(f"""v_and_b32 v{T+2}, 1, v{T}
    v_lshlrev_b32 v{T+2}, 1, v{T+2}
    v_and_b32 v{T+3}, 2, v{T}
    v_lshl_or_b32 v{T+2}, v{T+3}, 2, v{T+2}""")
    a(f"""v_xor_b32 v{T+1}, v{T+1}, v{T+2}
    s_lshl_b32 s44, s36, 4
    v_add_u32 v{T}, s44, v{T}
    v_mul_u32_u24 v{T}, {WP}, v{T}
    v_lshl_add_u32 v{T}, v{T+1}, 4, v{T}
    s_lshl_b32 s44, s41, 1
    v_add_u32 v{DA+4}, s44, v{T}""")
    for i in range(1,NW): a(f"v_add_u32 v{DA+4+i}, {i*RPI*WP}, v{DA+4}")
    a(f"""v_and_b32 v{T+4}, 31, v{LN}
    v_lshrrev_b32 v{T+5}, 5, v{LN}
    s_mul_i32 s44, s42, {32*TM}
    s_add_u32 s44, s44, s40
    v_add_u32 v{T+6}, s44, v{T+4}
    s_lshl_b32 s45, s43, 6
    s_add_u32 s45, s45, s41
    v_lshl_add_u32 v{T+7}, v{T+5}, 5, s45
    v_mul_u32_u24 v{OA}, {WP}, v{T+6}
    v_lshl_add_u32 v{OA}, v{T+7}, 1, v{OA}
    v_lshlrev_b32 v{OA+1}, 3, v{T+6}
    s_waitcnt lgkmcnt(0)""")
    if st=='A': a.srd(8,32,0,S*1280)
    if st=='B': a.srd(8,4,WS_H+2*1280,S*1280)
    if st=='C': a.srd(8,4,WS_X1,S*1280)
    if st=='D': a.srd(8,4,WS_G,S*3072)
    a.srd(12,6,0,K*WP)
    a(f"""s_lshl_b32 s46, s36, 12
    s_mul_i32 s47, s36, {NW*1024}
    s_add_u32 s47, s47, {ASZ}
    s_mov_b32 s48, 0
    s_mov_b32 s49, 0""")
    def dma():
        for i in range(NA): a(f"s_add_u32 m0, s46, {i*1024}\ns_nop 0\nbuffer_load_dwordx4 v{DA+i}, s[8:11], s48 offen lds")
        for i in range(NW): a(f"s_add_u32 m0, s47, {i*1024}\ns_nop 0\nbuffer_load_dwordx4 v{DA+4+i}, s[12:15], s49 offen lds")
    def adv():
        a(f"s_add_u32 s46, s46, {SLOT}\ns_add_u32 s47, s47, {SLOT}\ns_add_u32 s48, s48, 128\ns_add_u32 s49, s49, {64*WP}")
    dma(); adv()
    npre=0
    if st=='A': a.srd(16,4,WS_H,2052*1280); a.srd(28,4,WS_ST,S*8)
    if st=='B': a.srd(16,4,WS_X1,S*1280)
    if st=='C': a.srd(16,4,WS_G,S*3072)
    if st=='D': a.srd(16,34,0,S*1280)
    for c in range(1,NS-1): dma(); adv()
    if st in 'BD':
        a.srd(20,32,0,S*1280); a.srd(28,4,WS_ST,S*8)
        for p in range(4): a(f"buffer_load_dwordx4 {vr(R1+4*p,4)}, v{OA}, s[20:23], 0 offen offset:{16*p}")
        a(f"buffer_load_dwordx2 {vr(MR,2)}, v{OA+1}, s[28:31], 0 offen"); npre=5
    if st=='D':
        a.srd(24,4,WS_X1,S*1280)
        for p in range(4): a(f"buffer_load_dwordx4 {vr(R2+4*p,4)}, v{OA}, s[24:27], 0 offen offset:{16*p}")
        a.srd(24,4,WS_Y,640*4096)
        a(f"""v_lshrrev_b32 v{T}, 4, v{LN}
        v_and_b32 v{T+1}, 15, v{LN}
        v_lshlrev_b32 v{T+2}, 2, v{T}
        v_xor_b32 v{T+1}, v{T+1}, v{T+2}
        s_lshl_b32 s44, s36, 4
        s_add_u32 s44, s44, s41
        v_add_u32 v{T}, s44, v{T}
        v_lshlrev_b32 v{T}, 12, v{T}
        v_lshl_add_u32 v{T}, v{T+1}, 4, v{T}
        s_lshl_b32 s44, s40, 1
        s_lshl_b32 s45, s36, 12""")
        for i in range(4):
            a(f"s_add_u32 m0, s45, {XTRA+i*1024}\ns_nop 0\nbuffer_load_dwordx4 v{T}, s[24:27], s44 offen lds\ns_add_u32 s44, s44, {4*4096}")
        npre+=8
    a(f"""v_lshrrev_b32 v{T}, 1, v{T+4}
    v_and_b32 v{T}, 7, v{T}
    v_xor_b32 v{T}, v{T}, v{T+5}
    v_lshlrev_b32 v{T}, 4, v{T}
    v_lshl_add_u32 v{T}, v{T+4}, 7, v{T}
    s_mul_i32 s44, s42, {TM*4096}
    v_add_u32 v{T}, s44, v{T}""")
    if stats: a(f"s_lshl_b32 s44, s36, 5\nv_xor_b32 v{T}, s44, v{T}")
    for j in range(4): a(f"v_xor_b32 v{AA+j}, {32*j}, v{T}")
    a(f"""v_bfe_u32 v{T}, v{LN}, 2, 2
    v_lshl_add_u32 v{T+1}, v{T+5}, 3, v{T}
    v_mul_u32_u24 v{T+1}, {LW}, v{T+1}
    v_and_b32 v{T+2}, 1, v{LN}
    v_lshlrev_b32 v{T+2}, 6, v{T+2}
    v_bfe_u32 v{T+3}, v{LN}, 1, 1
    v_lshl_or_b32 v{T+2}, v{T+3}, 3, v{T+2}
    v_bfe_u32 v{T+3}, v{LN}, 4, 1
    v_lshl_or_b32 v{T+2}, v{T+3}, 4, v{T+2}""")
    if NT==64: a(f"v_and_b32 v{T+3}, 2, v{T}\nv_lshlrev_b32 v{T+3}, 4, v{T+3}")
    else: a(f"""s_lshl_b32 s44, s43, 7
    v_or_b32 v{T+2}, s44, v{T+2}
    v_and_b32 v{T+3}, 1, v{T}
    v_lshlrev_b32 v{T+3}, 5, v{T+3}
    v_and_b32 v{T}, 2, v{T}
    v_lshl_or_b32 v{T+3}, v{T}, 6, v{T+3}""")
    a(f"""v_xor_b32 v{T+2}, v{T+2}, v{T+3}
    v_add_u32 v{T+1}, v{T+1}, v{T+2}
    v_add_u32 v{T+1}, {ASZ}, v{T+1}""")
    if stats:
        a(f"s_mul_i32 s44, s36, {16*LW}\nv_xor_b32 v{T+1}, s44, v{T+1}")
        for j in range(4):
            for tn in range(2): a(f"v_xor_b32 v{WA+2*j+tn}, {16*LW*j+32*tn}, v{T+1}")
        nwa=8
    else:
        a(f"v_mov_b32 v{WA}, v{T+1}\nv_xor_b32 v{WA+1}, 32, v{T+1}"); nwa=2
    for i in range(nacc): a(f"v_mov_b32 v{ACC+i}, 0")
    if stats:
        for i in range(6): a(f"v_mov_b32 v{RS+i}, 0")
        a(f"""v_mov_b32 v{T+8}, 0x3f803f80
        s_lshl_b32 s44, s36, 9
        s_add_u32 s44, s44, {XTRA}
        v_lshl_add_u32 v{T}, v{LN}, 3, s44
        ds_write_b64 v{T}, {vr(RS,2)}""")
    ONE=T+8
    def rd(j,b):
        for tm in range(TM): a(f"ds_read_b128 {vr(FA+(b*TM+tm)*4,4)}, v{AA+j} offset:{tm*4096}")
        for tn in range(2):
            for hf in range(2):
                if stats: a(f"ds_read_b64_tr_b16 {vr(FW+(b*2+tn)*4+2*hf,2)}, v{WA+2*j+tn} offset:{hf*4*LW}")
                else: a(f"ds_read_b64_tr_b16 {vr(FW+(b*2+tn)*4+2*hf,2)}, v{WA+tn} offset:{(16*j+hf*4)*LW}")
    nrd=TM+4
    def mm(j,b):
        fill=[]
        if stats:
            if WN==1 or j in (0,2):
                for tm in range(TM):
                    for i in range(4):
                        f=FA+(b*TM+tm)*4+i
                        fill+= [f"v_dot2c_f32_bf16 v{RS+tm}, v{f}, v{ONE}", f"v_dot2c_f32_bf16 v{RQ+tm}, v{f}, v{f}"]
            if (WM==4 and j==0) or (WM==2 and j in (1,)+(0,)):
                for i in range(4):
                    for tn in range(2): fill.append(f"v_dot2c_f32_bf16 v{CS+tn}, v{FW+(b*2+tn)*4+i}, v{ONE}")
        ms=[(tm,tn) for tm in range(TM) for tn in range(2)]
        per=-(-len(fill)//len(ms))
        for x,(tm,tn) in enumerate(ms):
            c=ACC+(tm*2+tn)*16
            a(f"v_mfma_f32_32x32x16_bf16 {vr(c,16)}, {vr(FW+(b*2+tn)*4,4)}, {vr(FA+(b*TM+tm)*4,4)}, {vr(c,16)}")
            for y in fill[x*per:(x+1)*per]: a(y)
    a(f"""s_mov_b32 s50, 0
    s_mov_b32 s51, 0
    s_mov_b32 s52, {NS-1}
    s_waitcnt vmcnt({(NS-2)*ND+npre}) lgkmcnt(0)
    s_barrier""")
    rd(0,0)
    a.lab(f"{L}_loop")
    a(f"""s_cmp_ge_u32 s50, {NCH-NS+1}
    s_cselect_b32 s10, 0, s10
    s_cselect_b32 s14, 0, s14""")
    rd(1,1); a(f"s_waitcnt lgkmcnt({nrd})")
    mm(0,0)
    dma()
    a(f"""s_add_u32 s52, s52, 1
    s_cmp_eq_u32 s52, {NS}
    s_cselect_b32 s52, 0, s52
    s_cselect_b32 s53, {-(NS-1)*SLOT}, {SLOT}
    s_add_u32 s46, s46, s53
    s_add_u32 s47, s47, s53
    s_add_u32 s48, s48, 128
    s_add_u32 s49, s49, {64*WP}""".replace(f"s_cselect_b32 s53, {-(NS-1)*SLOT}, {SLOT}",f"s_mov_b32 s53, {SLOT}\ns_cselect_b32 s53, {-(NS-1)*SLOT}, s53"))
    rd(2,0); a(f"s_waitcnt lgkmcnt({nrd})")
    mm(1,1)
    rd(3,1); a(f"s_waitcnt lgkmcnt({nrd})")
    mm(2,0)
    a(f"""s_add_u32 s51, s51, 1
    s_cmp_eq_u32 s51, {NS}
    s_cselect_b32 s51, 0, s51
    s_mov_b32 s53, {SLOT}
    s_cselect_b32 s53, {-(NS-1)*SLOT}, s53""")
    for j in range(4): a(f"v_add_u32 v{AA+j}, s53, v{AA+j}")
    for j in range(nwa): a(f"v_add_u32 v{WA+j}, s53, v{WA+j}")
    a(f"s_waitcnt vmcnt({(NS-2)*ND}) lgkmcnt(0)\ns_barrier")
    rd(0,0)
    mm(3,1)
    a(f"""s_add_u32 s50, s50, 1
    s_cmp_lt_u32 s50, {NCH}
    s_cbranch_scc1 {L}_loop""")
    a("s_waitcnt lgkmcnt(0)")
    E=FA
    if stats:
        a(f"""v_and_b32 v{T}, 31, v{LN}
        s_mul_i32 s44, s42, {32*TM*4}
        s_add_u32 s44, s44, {XTRA}
        v_lshl_add_u32 v{T+1}, v{T}, 2, s44
        v_bfe_u32 v{T+2}, v{LN}, 2, 1
        v_lshlrev_b32 v{T+2}, 5, v{T+2}
        v_bfe_u32 v{T+3}, v{LN}, 3, 2
        v_lshl_add_u32 v{T+2}, v{T+3}, 2, v{T+2}
        v_and_b32 v{T+3}, 3, v{LN}
        v_add_u32 v{T+2}, v{T+2}, v{T+3}
        s_lshl_b32 s44, s43, 8
        s_add_u32 s44, s44, {XTRA}
        v_lshl_add_u32 v{T+2}, v{T+2}, 2, s44
        v_lshrrev_b32 v{T+3}, 5, v{LN}
        v_lshl_add_u32 v{T+3}, v{T+3}, 7, s44""")
        for tm in range(TM): a(f"ds_add_f32 v{T+1}, v{RS+tm} offset:{128*tm}\nds_add_f32 v{T+1}, v{RQ+tm} offset:{512+128*tm}")
        for tn in range(2): a(f"ds_add_f32 v{T+2}, v{CS+tn} offset:{1024+64*tn}")
        a("s_waitcnt lgkmcnt(0)\ns_barrier")
        for tm in range(TM): a(f"ds_read_b32 v{RS+tm}, v{T+1} offset:{128*tm}\nds_read_b32 v{RQ+tm}, v{T+1} offset:{512+128*tm}")
        for p in range(8): a(f"ds_read_b128 {vr(R1+4*p,4)}, v{T+3} offset:{1024+16*p}")
        a("s_waitcnt lgkmcnt(8)")
        for tm in range(TM):
            m=RS+tm; q=RQ+tm
            a(f"""v_mul_f32 v{m}, {f2h(1/640)}, v{m}
            v_mul_f32 v{q}, {f2h(1/640)}, v{q}
            v_fma_f32 v{q}, -v{m}, v{m}, v{q}
            v_max_f32 v{q}, 0, v{q}
            v_add_f32 v{T+4}, {f2h(1e-5)}, v{q}
            v_rsq_f32 v{T+4}, v{T+4}
            s_nop 0""")
            if st=='A':
                a(f"""v_mul_f32 v{q}, v{q}, v{T+4}
                v_mul_f32 v{q}, v{q}, v{T+4}
                v_add_f32 v{q}, {f2h(1e-5)}, v{q}
                v_rsq_f32 v{q}, v{q}
                v_mov_b32 v{T+6}, v{m}
                v_mov_b32 v{T+7}, v{T+4}
                v_mul_f32 v{q}, v{q}, v{T+4}
                s_cmp_lg_u32 s38, 0
                s_cbranch_scc1 A_nost
                buffer_store_dwordx2 {vr(T+6,2)}, v{OA+1}, s[28:31], 0 offen""")
                a.lab("A_nost")
            else: a(f"v_mov_b32 v{q}, v{T+4}")
        if st=='A':
            a(f"""v_lshrrev_b32 v{T+4}, 5, v{LN}
            v_lshl_add_u32 v{T+4}, v{T+4}, 5, s41
            v_mov_b32 v{T+9}, v{OA}""")
            for p in range(4):
                a(f"""v_mov_b32 v{T+5}, {3*1280}
                v_mov_b32 v{T+10}, {1*1280}
                v_cmp_le_u32 vcc, {160-8*p}, v{T+4}
                s_nop 1
                v_cndmask_b32 v{T+5}, v{T+5}, v{T+10}, vcc
                v_mov_b32 v{T+10}, {4*1280}
                v_cmp_le_u32 vcc, {320-8*p}, v{T+4}
                s_nop 1
                v_cndmask_b32 v{T+5}, v{T+5}, v{T+10}, vcc
                v_cmp_gt_u32 vcc, {480-8*p}, v{T+4}
                s_nop 1
                v_cndmask_b32 v{T+5}, 0, v{T+5}, vcc
                v_add_u32 v{OA+p}, v{T+9}, v{T+5}""")
        a(f"""s_mov_b32 s54, {f2h(-K2)}
        s_mov_b32 s55, {f2h(-K2)}
        v_mov_b32 v{T+10}, {f2h(-K1)}
        v_mov_b32 v{T+11}, {f2h(-K1)}
        s_waitcnt lgkmcnt(0)""")
        for tm in range(TM):
            a(f"""v_sub_f32 v{T+12}, 0, v{RS+tm}
            v_mov_b32 v{T+14}, v{RQ+tm}""")
            for p in range(4):
                c=ACC+tm*32+8*p; e=E+(p%2)*16
                for i in range(0,8,2): a(f"v_pk_fma_f32 {vr(c+i,2)}, {vr(R1+8*p+i,2)}, {vr(T+12,2)}, {vr(c+i,2)} op_sel_hi:[1,0,1]")
                for i in range(0,8,2): a(f"v_pk_mul_f32 {vr(c+i,2)}, {vr(c+i,2)}, {vr(T+14,2)} op_sel_hi:[1,0]")
                for i in range(0,8,2): a(f"v_pk_mul_f32 {vr(e+i,2)}, {vr(c+i,2)}, {vr(c+i,2)}")
                for i in range(0,8,2): a(f"v_pk_fma_f32 {vr(e+i,2)}, {vr(e+i,2)}, s[54:55], {vr(T+10,2)}")
                for i in range(0,8,2): a(f"v_pk_mul_f32 {vr(e+i,2)}, {vr(e+i,2)}, {vr(c+i,2)}")
                for i in range(8): a(f"v_exp_f32 v{e+i}, v{e+i}")
                for i in range(0,8,2): a(f"v_pk_add_f32 {vr(e+i,2)}, {vr(e+i,2)}, 1.0 op_sel_hi:[1,0]")
                for i in range(8): a(f"v_rcp_f32 v{e+i}, v{e+i}")
                for i in range(0,8,2): a(f"v_pk_mul_f32 {vr(e+i,2)}, {vr(e+i,2)}, {vr(c+i,2)}")
                for i in range(4): a(f"v_cvt_pk_bf16_f32 v{e+8+i}, v{e+2*i}, v{e+2*i+1}")
                if st=='A': a(f"buffer_store_dwordx4 {vr(e+8,4)}, v{OA+p}, s[16:19], 0 offen offset:{16*p}")
                else:
                    a(f"s_mov_b32 s56, {tm*32*WP}\nbuffer_store_dwordx4 {vr(e+8,4)}, v{OA}, s[16:19], s56 offen offset:{16*p}")
    else:
        if st=='D':
            Y=T+0
            a(f"""v_bfe_u32 v{E}, v{LN}, 2, 2
            v_lshrrev_b32 v{E+1}, 5, v{LN}
            v_lshl_add_u32 v{E+1}, v{E+1}, 5, v{E}
            v_lshlrev_b32 v{E+1}, 8, v{E+1}
            v_xor_b32 v{E}, s36, v{E}
            v_lshl_add_u32 v{E+1}, v{E}, 6, v{E+1}
            v_bfe_u32 v{E}, v{LN}, 4, 1
            v_lshl_add_u32 v{E+1}, v{E}, 5, v{E+1}
            v_and_b32 v{E}, 3, v{LN}
            v_lshl_add_u32 v{E+1}, v{E}, 3, v{E+1}
            v_add_u32 v{E+1}, {XTRA}, v{E+1}""")
            for z in range(8): a(f"ds_read_b64_tr_b16 {vr(Y+2*z,2)}, v{E+1} offset:{z*1024}")
        a(f"""v_mul_f32 v{MR}, v{MR}, v{MR+1}
        v_sub_f32 v{MR}, 0, v{MR}
        s_mov_b32 s54, 0xffff0000
        s_nop 7
        s_waitcnt lgkmcnt(0)""")
        for p in range(4):
            c=ACC+8*p; e=E+(p%2)*4; t=E+8
            for i in range(4):
                x=R1+4*p+i
                a(f"v_lshlrev_b32 v{t}, 16, v{x}\nv_and_b32 v{t+1}, s54, v{x}")
                if st=='B':
                    a(f"""v_pk_fma_f32 {vr(t,2)}, {vr(t,2)}, {vr(MR,2)}, {vr(MR,2)} op_sel:[0,1,0] op_sel_hi:[1,1,0]
                    v_pk_add_f32 {vr(c+2*i,2)}, {vr(c+2*i,2)}, {vr(t,2)}""")
                else:
                    a(f"""v_pk_add_f32 {vr(c+2*i,2)}, {vr(c+2*i,2)}, {vr(t,2)}
                    v_pk_fma_f32 {vr(t,2)}, {vr(t,2)}, {vr(MR,2)}, {vr(MR,2)} op_sel:[0,1,0] op_sel_hi:[1,1,0]
                    v_lshlrev_b32 v{t+2}, 16, v{Y+4*p+i}
                    v_and_b32 v{t+3}, s54, v{Y+4*p+i}
                    v_pk_fma_f32 {vr(c+2*i,2)}, {vr(t,2)}, {vr(t+2,2)}, {vr(c+2*i,2)}
                    v_lshlrev_b32 v{t}, 16, v{R2+4*p+i}
                    v_and_b32 v{t+1}, s54, v{R2+4*p+i}
                    v_pk_add_f32 {vr(c+2*i,2)}, {vr(c+2*i,2)}, {vr(t,2)}""")
                a(f"v_cvt_pk_bf16_f32 v{e+i}, v{c+2*i}, v{c+2*i+1}")
            a(f"buffer_store_dwordx4 {vr(e,4)}, v{OA}, s[16:19], 0 offen offset:{16*p}")
    a("s_waitcnt vmcnt(0)\ns_endpgm")
    return LN+1, XTRA+(2048 if stats else (16384 if st=='D' else 0))
```

```python
from common import *
def prepass(a):
    KR=0
    VR=48
    SK=84
    KV=100
    KU=110; SU=124; O=128; T=144; LN=152
    a(f"""s_load_dwordx2 s[4:5], s[0:1], {KA['ws']}
    s_load_dwordx2 s[6:7], s[0:1], {KA['k']}
    s_load_dwordx2 s[32:33], s[0:1], {KA['v']}
    s_load_dwordx2 s[34:35], s[0:1], {KA['shk']}
    s_and_b32 s37, s2, 7
    s_lshr_b32 s38, s2, 3
    v_mov_b32 v{LN}, v0
    v_and_b32 v{T}, 7, v{LN}
    v_lshrrev_b32 v{T+1}, 3, v{LN}
    s_lshl_b32 s40, s37, 8
    v_lshl_add_u32 v{T+1}, v{T+1}, 3, s40
    s_lshl_b32 s41, s38, 3
    v_add_u32 v{T}, s41, v{T}
    v_mul_u32_u24 v{T+2}, 1280, v{T+1}
    v_lshl_add_u32 v{T+2}, v{T}, 4, v{T+2}
    v_lshlrev_b32 v{T+3}, 6, v{T}
    s_waitcnt lgkmcnt(0)""")
    a.srd(8,6,0,S*1280); a.srd(12,32,0,S*1280); a.srd(16,34,0,640*8); a.srd(20,4,WS_U0,2*640*UP)
    for p in range(4): a(f"buffer_load_dwordx4 {vr(SK+4*p,4)}, v{T+3}, s[16:19], 0 offen offset:{16*p}")
    for r in range(12):
        a(f"v_add_u32 v{T+4}, {(r-4)*1280}, v{T+2}\nbuffer_load_dwordx4 {vr(KR+4*r,4)}, v{T+4}, s[8:11], 0 offen")
        if r>=3: a(f"buffer_load_dwordx4 {vr(VR+4*(r-3),4)}, v{T+4}, s[12:15], 0 offen")
    a(f"""v_mul_u32_u24 v{T+5}, {8*UP}, v{T}
    v_sub_u32 v{T+6}, 2040, v{T+1}
    v_lshl_add_u32 v{T+5}, v{T+6}, 1, v{T+5}
    s_mov_b32 s54, 0xffff0000
    s_mov_b32 s55, {640*UP}""")
    for i in range(4): a(f"v_mov_b32 v{O+i}, 0")
    a(f"""s_cmp_lg_u32 s37, 0
    s_cbranch_scc1 P_nz
    v_lshrrev_b32 v{T+6}, 2, v{LN}
    s_lshl_b32 s41, s38, 6
    v_add_u32 v{T+6}, s41, v{T+6}
    v_mul_u32_u24 v{T+6}, {UP}, v{T+6}
    v_and_b32 v{T+7}, 3, v{LN}
    v_lshl_add_u32 v{T+6}, v{T+7}, 5, v{T+6}
    v_add_u32 v{T+6}, 4096, v{T+6}
    buffer_store_dwordx4 {vr(O,4)}, v{T+6}, s[20:23], 0 offen
    buffer_store_dwordx4 {vr(O,4)}, v{T+6}, s[20:23], 0 offen offset:16
    buffer_store_dwordx4 {vr(O,4)}, v{T+6}, s[20:23], s55 offen
    buffer_store_dwordx4 {vr(O,4)}, v{T+6}, s[20:23], s55 offen offset:16
    s_cmp_lg_u32 s38, 0
    s_cbranch_scc1 P_nz""")
    a.srd(24,4,WS_H,2052*1280)
    a(f"""v_lshlrev_b32 v{T+6}, 4, v{LN}
    v_cmp_gt_u32 vcc, 20, v{LN}
    s_and_saveexec_b64 s[56:57], vcc
    s_cbranch_execz P_z2""")
    for row,g in ((0,0),(2047,1),(0,2),(1,2),(2046,3),(2047,3)):
        a(f"s_mov_b32 s58, {(row+2)*1280+g*320}\nbuffer_store_dwordx4 {vr(O,4)}, v{T+6}, s[24:27], s58 offen")
    a.lab("P_z2"); a("s_mov_b64 exec, s[56:57]")
    a.lab("P_nz")
    a("s_waitcnt vmcnt(0)")
    def up(d,s,hi): a(f"v_and_b32 v{d}, s54, v{s}" if hi else f"v_lshlrev_b32 v{d}, 16, v{s}")
    for c in range(8):
        for j in range(4): up(SU+j, SK+2*c+j//2, j&1)
        for r in range(12): up(KU+r, KR+4*r+c//2, c&1)
        for r in range(9):
            a(f"v_mul_f32 v{KV+r}, v{KU+r+3}, v{SU}")
        for j in range(1,4):
            for r in range(9): a(f"v_fmac_f32 v{KV+r}, v{KU+r+3-j}, v{SU+j}")
        for r in range(9): up(KU+r, VR+4*r+c//2, c&1)
        for r in range(9): a(f"v_mul_f32 v{KV+r}, v{KV+r}, v{KU+r}")
        o=O+8*(c&1)
        for i in range(4): a(f"v_cvt_pk_bf16_f32 v{o+i}, v{KV+8-2*i}, v{KV+7-2*i}")
        for i in range(4): a(f"v_cvt_pk_bf16_f32 v{o+4+i}, v{KV+7-2*i}, v{KV+6-2*i}")
        a(f"""s_mov_b32 s56, {c*UP}
        s_mov_b32 s57, {c*UP+640*UP}
        buffer_store_dwordx4 {vr(o,4)}, v{T+5}, s[20:23], s56 offen
        buffer_store_dwordx4 {vr(o+4,4)}, v{T+5}, s[20:23], s57 offen""")
    a("s_waitcnt vmcnt(0)\ns_endpgm")
    return LN+1

WIMG=33*1024; KIMG=4096+1024; CW=WIMG+KIMG
def conv(a,L,ch0):
    AL=0; AH=16; BL=32; FB=48
    LN=72; WA=73; KAa=74; T=76; DD=92; OA=93
    a(f"""s_load_dwordx2 s[4:5], s[0:1], {KA['ws']}
    s_load_dwordx2 s[6:7], s[0:1], {KA['ssmk']}
    s_load_dwordx2 s[32:33], s[0:1], {KA['ssmD']}
    v_lshrrev_b32 v{T}, 6, v0
    v_and_b32 v{LN}, 63, v0
    v_readfirstlane_b32 s36, v{T}
    s_lshl_b32 s37, s2, 2
    s_add_u32 s37, s37, {ch0}
    s_add_u32 s37, s37, s36
    s_mul_i32 s38, s36, {CW}""")
    a(f"""v_and_b32 v{T}, 31, v{LN}
    v_lshrrev_b32 v{T+1}, 5, v{LN}
    v_lshlrev_b32 v{T+2}, 7, v{T}
    v_lshl_add_u32 v{T+2}, v{T+1}, 6, v{T+2}
    s_lshl_b32 s39, s37, 12""")
    a(f"""v_sub_u32 v{T+3}, 87, v{LN}
    v_and_b32 v{T+4}, 1, v{T+3}
    v_and_b32 v{T+3}, 0xfffe, v{T+3}
    v_lshlrev_b32 v{T+3}, 1, v{T+3}
    s_mov_b32 s40, {640*UP}
    v_mul_lo_u32 v{T+4}, v{T+4}, s40
    v_add_u32 v{T+3}, v{T+3}, v{T+4}
    s_mul_i32 s40, s37, {UP}
    v_lshlrev_b32 v{T+5}, 1, v{LN}
    s_lshl_b32 s41, s37, 1
    v_mov_b32 v{T+5}, s41
    s_waitcnt lgkmcnt(0)""")
    a.srd(8,6,0,640*4096); a.srd(12,4,WS_U0-128,2*640*UP+128); a.srd(16,4,WS_Y,640*4096); a.srd(20,32,0,1280)
    for q in range(4):
        a(f"s_add_u32 m0, s38, {WIMG+1024+q*1024-16*q}\ns_nop 0\nbuffer_load_dwordx4 v{T+2}, s[8:11], s39 offen offset:{16*q} lds")
    order=[0,16]
    for x in range(16): order+= ([x+1] if x+1<16 else [])+[x+17]
    assert sorted(order)==list(range(33))
    for i in order:
        a(f"s_add_u32 m0, s38, {i*1024}\ns_add_u32 s42, s40, {(32-i)*128}\nbuffer_load_dwordx4 v{T+3}, s[12:15], s42 offen lds")
    a(f"buffer_load_ushort v{DD}, v{T+5}, s[20:23], 0 offen")
    a(f"""v_bfe_u32 v{T+2}, v{LN}, 2, 1
    v_lshlrev_b32 v{T+2}, 4, v{T+2}
    v_bfe_u32 v{T+3}, v{LN}, 3, 2
    v_lshl_add_u32 v{T+2}, v{T+3}, 2, v{T+2}
    v_and_b32 v{T+3}, 3, v{LN}
    v_add_u32 v{T+2}, v{T+2}, v{T+3}
    v_lshl_add_u32 v{T+2}, v{T+1}, 5, v{T+2}
    v_lshl_add_u32 v{WA}, v{T+2}, 4, s38""")
    a(f"""v_bfe_u32 v{T+2}, v{LN}, 4, 1
    v_and_b32 v{T+3}, 15, v{LN}
    v_lshl_add_u32 v{T+3}, v{T+3}, 1, v{T+2}
    v_sub_u32 v{T+4}, v{T+3}, v{T+1}
    v_and_b32 v{T+5}, 1, v{T+4}
    v_ashrrev_i32 v{T+6}, 1, v{T+4}
    v_lshl_add_u32 v{T+6}, v{T+5}, 5, v{T+6}
    s_add_u32 s42, s38, {WIMG+1024}
    v_lshl_add_u32 v{KAa}, v{T+6}, 4, s42
    v_cmp_gt_i32 vcc, 0, v{T+4}""")
    a(f"""v_lshlrev_b32 v{OA}, 6, v{T+3}
    v_lshl_add_u32 v{OA}, v{T+1}, 5, v{OA}
    v_lshl_add_u32 v{OA+1}, v{OA}, 3, s38""")
    for i in range(32): a(f"v_mov_b32 v{i}, 0")
    a(f"s_waitcnt vmcnt({33+1})")
    for q in range(4): a(f"ds_read_b128 {vr(BL+4*q,4)}, v{KAa} offset:{q*1024}")
    a("s_waitcnt lgkmcnt(0)")
    for i in range(16): a(f"v_cndmask_b32 v{BL+i}, v{BL+i}, v0, vcc")
    def rd(q,b,nx):
        f=FB+12*b; wo=(24-8*q)*16+nx*1024
        a(f"""ds_read_b128 {vr(f,4)}, v{WA} offset:{wo}
        ds_read_b128 {vr(f+8,4)}, v{KAa} offset:{q*1024+256-16*nx}
        ds_read_b128 {vr(f+4,4)}, v{WA} offset:{wo+16384}""")
    def mm(q,b):
        f=FB+12*b
        a(f"""v_mfma_f32_32x32x16_bf16 {vr(AL,16)}, {vr(f,4)}, {vr(BL+4*q,4)}, {vr(AL,16)}
        v_mfma_f32_32x32x16_bf16 {vr(AH,16)}, {vr(f,4)}, {vr(f+8,4)}, {vr(AH,16)}
        v_mfma_f32_32x32x16_bf16 {vr(AH,16)}, {vr(f+4,4)}, {vr(BL+4*q,4)}, {vr(AH,16)}""")
        for i in range(4): a(f"v_mov_b32_dpp v{BL+4*q+i}, v{BL+4*q+i} row_shr:1 row_mask:0xf bank_mask:0xf bound_ctrl:0")
    def body(w):
        rd(1,1,0); a("s_waitcnt lgkmcnt(3)"); mm(0,0)
        rd(2,0,0); a("s_waitcnt lgkmcnt(3)"); mm(1,1)
        rd(3,1,0); a("s_waitcnt lgkmcnt(3)"); mm(2,0)
        if w is not None: a(w)
        rd(0,0,1); a("s_waitcnt lgkmcnt(3)"); mm(3,1)
        a(f"v_add_u32 v{WA}, 1024, v{WA}\nv_add_u32 v{KAa}, -16, v{KAa}")
    a(f"s_waitcnt vmcnt({34-4})")
    rd(0,0,0)
    a("s_mov_b32 s50, 0")
    a.lab(f"{L}_cl")
    body(f"""s_waitcnt vmcnt(26)
    s_cmp_lt_u32 s50, 1
    s_cbranch_scc1 {L}_w
    s_waitcnt vmcnt(18)
    s_cmp_lt_u32 s50, 3
    s_cbranch_scc1 {L}_w
    s_waitcnt vmcnt(8)
    s_cmp_lt_u32 s50, 5
    s_cbranch_scc1 {L}_w
    s_waitcnt vmcnt(0)
    {L}_w:""")
    a(f"""s_add_u32 s50, s50, 1
    s_cmp_lt_u32 s50, 16
    s_cbranch_scc1 {L}_cl
    s_waitcnt lgkmcnt(0)""")
    for t in range(2):
        for z in range(2): a(f"ds_read_b128 {vr(FB+8*t+4*z,4)}, v{OA+1} offset:{(31+8*z)*16+t*16384}")
    a(f"""v_lshlrev_b32 v{DD}, 16, v{DD}
    s_mov_b32 s54, 0xffff0000
    s_nop 7
    s_waitcnt lgkmcnt(0)""")
    for t in range(2):
        for z in range(2):
            c=16*t+8*z; u=FB+8*t+4*z; o=BL+8*t+4*z
            for i in range(4):
                a(f"""v_lshlrev_b32 v{T}, 16, v{u+i}
                v_and_b32 v{T+1}, s54, v{u+i}
                v_fmac_f32 v{c+7-2*i}, v{T}, v{DD}
                v_fmac_f32 v{c+6-2*i}, v{T+1}, v{DD}""")
            for i in range(4): a(f"v_cvt_pk_bf16_f32 v{o+i}, v{c+2*i}, v{c+2*i+1}")
            a(f"buffer_store_dwordx4 {vr(o,4)}, v{OA}, s[16:19], s39 offen offset:{t*2048+16*z}")
    a("s_waitcnt vmcnt(0)\ns_endpgm")
    return OA+2, 4*CW
```

```python
import sys
from common import *
from gemm import gemm
from side import *
def build(extra_empty=0):
    ks=[]
    a=Asm()
    def head(n):
        a.l.append(f".globl {n}\n.p2align 8\n.type {n},@function\n{n}:")
    for st,ng,ns in (('A',160,80),('B',160,96),('C',192,64),('D',160,0)):
        n=f"k{st}_kernel"; head(n)
        a(f"s_cmp_ge_u32 s2, {ng}\ns_cbranch_scc1 {st}_side")
        nv,lds=gemm(a,st)
        a.lab(f"{st}_side")
        if ns:
            a(f"s_sub_u32 s2, s2, {ng}\ns_cmp_ge_u32 s2, {ns}\ns_cbranch_scc1 {st}_end")
            if st=='A': nv=max(nv,prepass(a))
            else:
                v2,l2=conv(a,st,0 if st=='B' else 384); nv=max(nv,v2); lds=max(lds,l2)
            a.lab(f"{st}_end")
        a("s_endpgm")
        ks.append((n,ng+ns,lds,nv))
    for i in range(extra_empty):
        n=f"e{i}_kernel"; head(n); a("s_endpgm"); ks.append((n,256,0,8))
    o=""
    for n,g,lds,nv in ks: o+=f"; @launch kernel={n} grid=({g},1,1) block=(256,1,1) lds={lds}\n"
    o+='.amdgcn_target "amdgcn-amd-amdhsa--gfx950"\n.text\n'+a.text()+'.section .rodata,"a"\n'
    for n,g,lds,nv in ks:
        nv=(nv+7)//8*8
        o+=f""".p2align 6
.amdhsa_kernel {n}
  .amdhsa_next_free_vgpr {nv}
  .amdhsa_next_free_sgpr 64
  .amdhsa_accum_offset {nv}
  .amdhsa_group_segment_fixed_size 0
  .amdhsa_kernarg_size 112
  .amdhsa_user_sgpr_count 2
  .amdhsa_user_sgpr_kernarg_segment_ptr 1
  .amdhsa_system_sgpr_workgroup_id_x 1
.end_amdhsa_kernel
"""
    return o
if __name__=="__main__":
    out=sys.argv[1] if len(sys.argv)>1 else "parallel_sum__ssm_conv_h3__mixer_s_mlp__prompt.s"
    open(out,"w").write(build(int(sys.argv[2]) if len(sys.argv)>2 else 0))
```
